```python
import torch

def _softmax(x, axis=-1):
    return torch.softmax(x, dim=axis)
def _gelu(x):
    return torch.nn.functional.gelu(x, approximate="tanh")
def _silu(x):
    return torch.nn.functional.silu(x)
def _sigmoid(x):
    return torch.sigmoid(x)
def _layernorm(x, axis=-1, eps=1e-5):
    m = x.mean(dim=axis, keepdim=True)
    v = x.var(dim=axis, keepdim=True, unbiased=False)
    return (x - m) / torch.sqrt(v + eps)
def _scatter_add(tgt, idx, src, axis=0):
    return tgt.clone().index_add_(axis, idx, src)
def _segment_sum(src, seg, n):
    out = torch.zeros((n,) + src.shape[1:], dtype=src.dtype)
    return out.index_add_(0, seg, src)
def _pad(x, pw):
    flat = tuple(v for pair in reversed(pw) for v in pair)
    return torch.nn.functional.pad(x, flat)

kernel_name = 'standalone__mha_block_cached__near_ridge'

def setup_inputs():

    _w = (lambda a: (lambda t: t.to(torch.bfloat16) if t.is_floating_point() else t)(torch.as_tensor(a)))
    B, Sq, D = 32, 128, 448
    H, Sk, Dh = 16, 512, 256
    return {
        "x": _w((lambda *s: torch.randn(*s, dtype=torch.bfloat16) * 0.8)(B, Sq, D)),
        "k_cache": _w((lambda *s: torch.randn(*s, dtype=torch.bfloat16) * 0.8)(B, H, Sk, Dh)),
        "v_cache": _w((lambda *s: torch.randn(*s, dtype=torch.bfloat16) * 0.05)(B, H, Sk, Dh)),
        "wq": _w((lambda *s: torch.randn(*s, dtype=torch.bfloat16) * 0.8)(D, H * Dh) * (D ** -0.5)),
        "wo": _w((lambda *s: torch.randn(*s, dtype=torch.bfloat16) * 0.05)(H * Dh, D) * ((H * Dh) ** -0.5)),
    }

def reference(x, k_cache, v_cache, wq, wo):
    B, Sq, D = x.shape
    H, Dh = 16, 256
    q = (lambda x, *d: x.permute(*d))((x @ wq).reshape(B, Sq, H, Dh), 0, 2, 1, 3)
    scores = torch.einsum("bhqd,bhkd->bhqk", q, k_cache) * (Dh ** -0.5)
    p = _softmax(scores, axis=-1)
    o = torch.einsum("bhqk,bhkd->bhqd", p, v_cache)
    return (lambda x, *d: x.permute(*d))(o, 0, 2, 1, 3).reshape(B, Sq, H * Dh) @ wo
```

```python
import sys, math, argparse

KMAIN = 'standalone__mha_block_cached__near_ridge_kernel'
KRED = 'mha_reduce_kernel'


def R(kind, lo, n=1):
    return {(kind, lo + i) for i in range(n)}


def rng(kind, lo, n):
    return f'{kind}{lo}' if n == 1 else f'{kind}[{lo}:{lo + n - 1}]'


class I:
    def __init__(self, txt, kind, rd=(), wr=(), cost=4, tag=None, waitfor=None, srcc=None, e=None, d=None):
        self.txt, self.kind = txt, kind
        self.rd, self.wr = set(rd), set(wr)
        self.cost, self.tag, self.waitfor, self.srcc = cost, tag, waitfor, srcc
        self.e, self.d = e, d


def valu(txt, rd=(), wr=(), **k):
    return I(txt, 'valu', rd, wr, **k)


def trans(txt, rd=(), wr=(), **k):
    return I(txt, 'trans', rd, wr, cost=8, **k)


def salu(txt, rd=(), wr=(), **k):
    return I(txt, 'salu', rd, wr, **k)


vT = [1, 2]
vK = [3, 4, 5, 6]
vOK, vOV, vOQ, vOO = 7, 8, 9, 10
vMC, vTHR, vMX, vL0, vL1, vRL, vT1, vT2, vF = 11, 12, 13, 14, 15, 16, 17, 18, 19
vST = 20
vTMP = 24
ACC = 32
QR = 64
PR = 128
FR = 224
A_X = 0
A_QACC = 128
A_QLO = 192
sX, sK, sV, sWQ, sWO, sWS = 8, 12, 16, 20, 24, 28
sLW, sOFF, sC, sIC, sRET = 4, 5, 6, 7, 90
NSLOT = 10
SLOT = 16384
CSC = math.log2(math.e) / 16.0


def f2u(x):
    import struct
    return struct.unpack('<I', struct.pack('<f', x))[0]


class Gen:
    def __init__(self, o):
        self.o = o
        self.LA = o.la
        self.M = []
        self.pre = {}
        self.post = {}
        self.chains = []
        self.prolog = []
        self.stubs = []
        self.win = {'T': 0, 'K': 0}

    def add_post(self, g, ins):
        if g < 0:
            self.prolog.append(ins)
        else:
            self.post.setdefault(g, []).append(ins)

    def make_steps(self):
        S = []
        for m in range(2):
            for dr in range(7):
                S.append(('Q', 0, m, dr))
        for t in range(16):
            S.append(('K', 0, t))
            if t < 14:
                S.append(('Q', 1, t // 7, t % 7))
        for hh in range(2):
            if hh == 1:
                for t in range(16):
                    S.append(('K', 1, t))
            for db in range(4):
                for t in range(4):
                    S.append(('V', hh, db, t))
                for n in range(4):
                    S.append(('O', hh, db, n))
        return S

    def dma_instrs(self, si):
        st = self.S[si]
        slot = si % NSLOT
        out = [salu(f's_add_u32 m0, s{sLW}, {slot * SLOT}', R('s', sLW), {'m0'})]
        for j in range(4):
            if st[0] == 'K':
                _, hh, t = st
                off = 4096 + hh * 262144 + 32 * t * 512 + j * 128 - 1024 * j
                v, srd, nt = vOK, sK, self.o.nt
            elif st[0] == 'V':
                _, hh, db, t = st
                off = hh * 262144 + (128 * t + 8 * j) * 512 + db * 128 - 1024 * j
                v, srd, nt = vOV, sV, self.o.nt
            elif st[0] == 'Q':
                _, hh, m, dr = st
                off = (64 * dr + 8 * j) * 8192 + hh * 512 + m * 256 - 1024 * j
                v, srd, nt = vOQ, sWQ, False
            else:
                _, hh, db, n = st
                off = (hh * 256 + 64 * db + 8 * j) * 896 + 256 * n - 1024 * j
                v, srd, nt = vOO, sWO, False
            assert off >= 0
            out.append(salu(f's_mov_b32 s{sOFF}, {off}', (), R('s', sOFF)))
            o = f' offset:{j * 1024}' if j else ''
            out.append(I(f'buffer_load_dwordx4 v{v}, s[{srd}:{srd + 3}], s{sOFF} offen{o}{" nt" if nt else ""} lds',
                         'dma', R('v', v) | R('s', sOFF) | {'m0'}, (), cost=self.o.dmacost, tag=('tile', si)))
        return out

    def step_mfmas(self, si):
        st = self.S[si]
        L = []
        if st[0] == 'Q':
            _, hh, m, dr = st
            if hh == 0:
                dk, dbase = 'v', PR + 64 * m
            elif m == 0:
                dk, dbase = 'v', PR + 64
            else:
                dk, dbase = 'a', A_QACC
            order = [(ks, dt) for ks in range(4) for dt in range(4)]
            if dr == 6:
                order = [(ks, dt) for dt in range(4) for ks in range(4)]
            for ks, dt in order:
                L.append((dk, dbase + 16 * dt, 'a', A_X + 4 * (4 * dr + ks), dr == 0 and ks == 0,
                          ('T', dt >> 1, ks, dt & 1), ('qdt', dt) if (dr == 6 and ks == 3) else None))
        elif st[0] == 'K':
            _, hh, t = st
            for s in range(16):
                L.append(('v', ACC + 16 * (t & 1), 'v', QR + 4 * s, s == 0, ('K', s), None))
        elif st[0] == 'V':
            _, hh, db, t = st
            order = [(ks, mt) for ks in range(8) for mt in range(2)]
            if t == 3 or (db == 0 and t == 0):
                order = [(ks, mt) for mt in range(2) for ks in range(8)]
            for ks, mt in order:
                L.append(('v', ACC + 16 * mt, 'v', PR + 4 * (8 * t + ks), t == 0 and ks == 0,
                          ('T', ks >> 2, ks & 3, mt), ('omt', mt) if (t == 3 and ks == 7) else None))
        else:
            _, hh, db, n = st
            nts = range(4) if n < 3 else range(2)
            order = [(ks, q) for ks in range(4) for q in nts]
            last = (hh == 1 and db == 3)
            if last and n > 0:
                order = [(ks, q) for q in nts for ks in range(4)]
            for ks, q in order:
                L.append(('a', 16 * (4 * n + q), 'v', ACC + 16 * (ks >> 1) + 4 * (ks & 1),
                          hh == 0 and db == 0 and ks == 0, ('T', q >> 1, ks, q & 1),
                          ('ont', 4 * n + q) if (last and ks == 3) else None))
        return L

    def frag_reads(self, si, gi, fd):
        slot = si % NSLOT
        base = (slot % 4) * SLOT
        fb = FR + 4 * (gi % 8)
        if fd[0] == 'K':
            s = fd[1]
            v = vK[s & 3]
            off = base + (s >> 2) * 1024
            return [I(f'ds_read_b128 a[{fb}:{fb + 3}], v{v} offset:{off}', 'ds', R('v', v), R('a', fb, 4), tag=('frag', gi))]
        _, sb, ks, mt = fd
        v = vT[mt]
        out = []
        for u in range(2):
            off = base + sb * 8192 + ks * 2048 + u * 512
            out.append(I(f'ds_read_b64_tr_b16 a[{fb + 2 * u}:{fb + 2 * u + 1}], v{v} offset:{off}', 'ds',
                         R('v', v), R('a', fb + 2 * u, 2), tag=('frag', gi)))
        return out

    def win_update(self, si):
        kind = 'K' if self.S[si][0] == 'K' else 'T'
        w = (si % NSLOT) // 4
        out = []
        if w != self.win[kind]:
            delta = ((w - self.win[kind]) * 65536) & 0xffffffff
            for v in (vK if kind == 'K' else vT):
                out.append(valu(f'v_add_u32 v{v}, 0x{delta:x}, v{v}', R('v', v), R('v', v)))
            self.win[kind] = w
        return out

    def softmax(self, hh, t, e, d):
        A = ACC + 16 * (t & 1)
        P = PR + 8 * t
        c = []
        mx = vMX
        c.append(valu(f'v_max3_f32 v{mx}, v{A}, v{A+1}, v{A+2}', R('v', A, 3), R('v', mx)))
        c.append(valu(f'v_max3_f32 v{vT1}, v{A+3}, v{A+4}, v{A+5}', R('v', A + 3, 3), R('v', vT1)))
        for i in range(6, 16, 4):
            c.append(valu(f'v_max3_f32 v{mx}, v{mx}, v{A+i}, v{A+i+1}', R('v', A + i, 2) | R('v', mx), R('v', mx)))
            if i + 2 < 16:
                c.append(valu(f'v_max3_f32 v{vT1}, v{vT1}, v{A+i+2}, v{A+i+3}', R('v', A + i + 2, 2) | R('v', vT1), R('v', vT1)))
        c.append(valu(f'v_max_f32 v{mx}, v{mx}, v{vT1}', R('v', mx) | R('v', vT1), R('v', mx)))
        if t == 0:
            c.append(valu(f'v_mov_b32 v{vT1}, v{mx}', R('v', mx), R('v', vT1)))
            c.append(valu(f'v_mov_b32 v{vL0}, 0', (), R('v', vL0)))
            c.append(valu(f'v_mov_b32 v{vL1}, 0', (), R('v', vL1)))
            c.append(I(f'v_permlane32_swap_b32 v{mx}, v{vT1}', 'perm', R('v', mx) | R('v', vT1), R('v', mx) | R('v', vT1)))
            c.append(valu(f'v_max_f32 v{mx}, v{mx}, v{vT1}', R('v', mx) | R('v', vT1), R('v', mx)))
            c.append(valu(f'v_mul_f32 v{vMC}, s{sC}, v{mx}', R('v', mx), R('v', vMC)))
            c.append(valu(f'v_ceil_f32 v{vMC}, v{vMC}', R('v', vMC), R('v', vMC)))
            c.append(valu(f'v_add_f32 v{vT1}, 0x41000000, v{vMC}', R('v', vMC), R('v', vT1)))
            c.append(valu(f'v_mul_f32 v{vTHR}, s{sIC}, v{vT1}', R('v', vT1), R('v', vTHR)))
        else:
            c.append(valu(f'v_cmp_gt_f32 vcc, v{mx}, v{vTHR}', R('v', mx) | R('v', vTHR), {'vcc'}))
            lab = f'{hh}_{t}'
            c.append(I(f's_cbranch_vccnz L_stub_{lab}\nL_back_{lab}:', 'branch', {'vcc'}))
            self.stubs.append((lab, t == 15, int(t >= 9)))
        seq = []
        for i in range(16 + 3):
            if i < 16:
                seq.append(valu(f'v_fma_f32 v{A+i}, v{A+i}, s{sC}, -v{vMC}', R('v', A + i) | R('v', vMC), R('v', A + i)))
            if 1 <= i < 17:
                k = i - 1
                seq.append(trans(f'v_exp_f32 v{A+k}, v{A+k}', R('v', A + k), R('v', A + k)))
            if 3 <= i < 19:
                k = i - 3
                l = vL0 if k % 2 == 0 else vL1
                seq.append(valu(f'v_add_f32 v{l}, v{l}, v{A+k}', R('v', l) | R('v', A + k), R('v', l)))
                if k % 2 == 1:
                    seq.append(valu(f'v_cvt_pk_bf16_f32 v{P + k//2}, v{A+k-1}, v{A+k}', R('v', A + k - 1, 2), R('v', P + k // 2)))
        c += seq
        for x in c:
            x.e, x.d = e, d
        return c

    def l_final(self, e, d):
        c = [valu(f'v_add_f32 v{vL0}, v{vL0}, v{vL1}', R('v', vL0) | R('v', vL1), R('v', vL0)),
             valu(f'v_mov_b32 v{vL1}, v{vL0}', R('v', vL0), R('v', vL1)),
             I(f'v_permlane32_swap_b32 v{vL0}, v{vL1}', 'perm', R('v', vL0) | R('v', vL1), R('v', vL0) | R('v', vL1)),
             valu(f'v_add_f32 v{vL0}, v{vL0}, v{vL1}', R('v', vL0) | R('v', vL1), R('v', vL0)),
             trans(f'v_rcp_f32 v{vRL}, v{vL0}', R('v', vL0), R('v', vRL))]
        for x in c:
            x.e, x.d = e, d
        return c

    def build(self):
        self.S = S = self.make_steps()
        LA = self.LA
        n = len(S)
        first = []
        ml = []
        gi = 0
        for si in range(n):
            first.append(gi)
            m = self.step_mfmas(si)
            ml.append(m)
            gi += len(m)
        first.append(gi)
        self.first = first
        NM = gi
        idx = {st: i for i, st in enumerate(S)}
        AHEAD = NSLOT - 1
        marks = {}
        P = self.prolog
        xl = lambda k: I(f'buffer_load_dwordx4 a[{A_X+4*k}:{A_X+4*k+3}], v{vTMP}, s[{sX}:{sX+3}], 0 offen offset:{32*k}',
                         'vmem', R('v', vTMP), R('a', A_X + 4 * k, 4), tag=('x', k // 4))
        npro = AHEAD - 1
        for si in range(npro):
            if si < 7:
                for k in range(4 * si, 4 * si + 4):
                    P.append(xl(k))
            P += self.dma_instrs(si)
        for si in range(n):
            g = first[si] - LA
            wf = [('tile', si)]
            if S[si][0] == 'Q' and S[si][1] == 0 and S[si][2] == 0:
                wf.append(('x', S[si][3]))
            if self.o.stamps >= 2:
                if si > 0:
                    self.add_post(g, I(f'v_writelane_b32 v{21 + (si - 1) // 64}, s72, {(si - 1) % 64}', 'stamp', cost=0))
                    self.add_post(g, I(f'v_writelane_b32 v{[23, 0][(si - 1) // 64]}, s74, {(si - 1) % 64}', 'stamp', cost=0))
                self.add_post(g, I('s_memtime s[72:73]' if self.o.stamps == 2 else 's_memrealtime s[72:73]', 'stamp', cost=0))
            self.add_post(g, I('', 'wait_vm', waitfor=wf))
            self.add_post(g, I('s_barrier', 'barrier'))
            if self.o.stamps >= 2:
                self.add_post(g, I('s_memtime s[74:75]', 'stamp', cost=0))
            for x in self.win_update(si):
                self.add_post(g, x)
            ti = si - 2 + NSLOT
            if npro <= ti < n:
                ch = self.dma_instrs(ti)
                dl = first[si + 1] - LA - 1
                for x in ch:
                    x.e, x.d = g, dl
                if g < 0:
                    self.prolog += ch
                else:
                    self.chains.append(ch)
            for k, (dk, db_, bk, bb, c0, fd, mark) in enumerate(ml[si]):
                g2 = first[si] + k
                fb = FR + 4 * (g2 % 8)
                for x in self.frag_reads(si, g2, fd):
                    self.add_post(g2 - LA, x)
                D = rng(dk, db_, 16)
                rd = R('a', fb, 4) | R(bk, bb, 4)
                mi = I(f'v_mfma_f32_32x32x16_bf16 {D}, a[{fb}:{fb+3}], {rng(bk, bb, 4)}, {"0" if c0 else D}', 'mfma',
                       rd, R(dk, db_, 16), cost=8, srcc=None if c0 else R(dk, db_, 16))
                self.M.append(mi)
                if g2 % 2 == 0:
                    self.pre.setdefault(g2, []).append(I('', 'wait_lgkm', waitfor=[('frag', min(g2 + 1, NM - 1))]))
                if mark:
                    marks[(si,) + mark] = g2
        HZ = 3
        qc = []
        k0 = first[idx[('K', 0, 0)]]
        for m in range(2):
            si = idx[('Q', 0, m, 6)]
            for dt in range(4):
                A = PR + 64 * m + 16 * dt
                DT = 4 * m + dt
                for i in range(8):
                    qc.append(valu(f'v_cvt_pk_bf16_f32 v{QR+8*DT+i}, v{A+2*i}, v{A+2*i+1}', R('v', A + 2 * i, 2), R('v', QR + 8 * DT + i),
                                   e=marks[(si, 'qdt', dt)] + HZ, d=max(k0 + 2 * DT + i // 4 - 2, marks[(si, 'qdt', dt)] + HZ)))
        self.chains.append(qc)
        qc = []
        si = idx[('Q', 1, 0, 6)]
        for dt in range(4):
            A = PR + 64 + 16 * dt
            e = marks[(si, 'qdt', dt)] + HZ
            d = first[idx[('K', 0, 8)] + 1] - 1
            for i in range(8):
                qc.append(valu(f'v_cvt_pk_bf16_f32 v{A+i}, v{A+2*i}, v{A+2*i+1}', R('v', A + 2 * i, 2), R('v', A + i), e=e, d=d))
            for i in range(8):
                qc.append(valu(f'v_accvgpr_write_b32 a{A_QLO+8*dt+i}, v{A+i}', R('v', A + i), R('a', A_QLO + 8 * dt + i), e=e, d=d))
        self.chains.append(qc)
        qc = []
        e = first[idx[('K', 0, 15)] + 1]
        d1 = first[idx[('O', 0, 0, 2)]] - 2
        d2 = first[idx[('O', 0, 0, 3)]] - 2
        for dt in range(4):
            for i in range(0, 8, 2):
                a = A_QACC + 16 * dt + 2 * i
                tb = vTMP + 4 * ((i // 2) % 2)
                for u in range(4):
                    qc.append(valu(f'v_accvgpr_read_b32 v{tb+u}, a{a+u}', R('a', a + u), R('v', tb + u), e=e, d=d1))
                for u in range(2):
                    q = QR + 32 + 8 * dt + i + u
                    qc.append(valu(f'v_cvt_pk_bf16_f32 v{q}, v{tb+2*u}, v{tb+2*u+1}', R('v', tb + 2 * u, 2), R('v', q), e=e, d=d1))
        for i in range(32):
            qc.append(valu(f'v_accvgpr_read_b32 v{QR+i}, a{A_QLO+i}', R('a', A_QLO + i), R('v', QR + i), e=e, d=d2))
        self.chains.append(qc)
        for hh in range(2):
            sc = []
            for t in range(16):
                si = idx[('K', hh, t)]
                e = first[si + 1] - 1 + HZ
                if t < 14:
                    d = min(first[idx[('K', hh, t + 1)] + 1] - 1 + HZ - 1, first[idx[('K', hh, t + 2)]] - 1)
                elif t == 14:
                    d = first[idx[('K', hh, 15)] + 1] - 1
                else:
                    d = first[si + 1] + 7
                sc += self.softmax(hh, t, e, d)
            sc += self.l_final(e, first[idx[('V', hh, 0, 3)]])
            self.chains.append(sc)
        for hh in range(2):
            for db in range(4):
                si = idx[('V', hh, db, 3)]
                o0 = first[si + 1]
                oc = []
                for mt in range(2):
                    A = ACC + 16 * mt
                    e = marks[(si, 'omt', mt)] + HZ
                    for half in range(2):
                        d = max(e, o0 + 4 * (2 * mt + half) - 2)
                        for i in range(8 * half, 8 * half + 8):
                            oc.append(valu(f'v_mul_f32 v{A+i}, v{A+i}, v{vRL}', R('v', A + i) | R('v', vRL), R('v', A + i), e=e, d=d))
                            if i % 2 == 1 and i >= 8 * half + 3:
                                k = i - 3
                                oc.append(valu(f'v_cvt_pk_bf16_f32 v{A+k//2}, v{A+k}, v{A+k+1}', R('v', A + k, 2), R('v', A + k // 2), e=e, d=d))
                        k = 8 * half + 6
                        oc.append(valu(f'v_cvt_pk_bf16_f32 v{A+k//2}, v{A+k}, v{A+k+1}', R('v', A + k, 2), R('v', A + k // 2), e=e, d=d))
                self.chains.append(oc)
        fc = []
        for nn in range(4):
            si = idx[('O', 1, 3, nn)]
            for q in range(4 if nn < 3 else 2):
                NT = 4 * nn + q
                e = marks[(si, 'ont', NT)] + HZ
                d = 10 ** 9
                tb = PR + 16 * (NT % 8)
                for i in range(16):
                    fc.append(valu(f'v_accvgpr_read_b32 v{tb+i}, a{16*NT+i}', R('a', 16 * NT + i), R('v', tb + i), e=e, d=d))
                for i in range(8):
                    fc.append(valu(f'v_cvt_pk_bf16_f32 v{tb+i}, v{tb+2*i}, v{tb+2*i+1}', R('v', tb + 2 * i, 2), R('v', tb + i), e=e, d=d))
                for sp in range(2):
                    u = 2 * NT + sp
                    if u % 4 == 0:
                        fc.append(salu(f's_mov_b32 s{sOFF}, {(u // 4) * 4096}', (), R('s', sOFF), e=e, d=d))
                    o = f' offset:{(u % 4) * 1024}' if u % 4 else ''
                    fc.append(I(f'buffer_store_dwordx4 v[{tb+4*sp}:{tb+4*sp+3}], v{vST}, s[{sWS}:{sWS+3}], s{sOFF} offen{o}{self.o.stflags}',
                                'store', R('v', tb + 4 * sp, 4) | R('v', vST) | R('s', sOFF), (), cost=self.o.dmacost, e=e, d=d))
        self.chains.append(fc)
        self.NM = NM

    def schedule(self):
        NM = self.NM
        BUD = self.o.budget
        mand = [sum(x.cost for x in self.post.get(g, [])) + sum(x.cost for x in self.pre.get(g + 1, [])) for g in range(NM)]
        spare = [max(0, BUD - m) for m in mand]
        cum = [0]
        for s in spare:
            cum.append(cum[-1] + s)
        pos = [0] * len(self.chains)
        out = list(self.prolog)
        stamps = self.o.stamps
        stepstart = {self.first[i]: i for i in range(len(self.S))}
        self.over = 0
        for g in range(NM):
            if g in stepstart:
                out.append(I(f'; ---- step {stepstart[g]} {self.S[stepstart[g]]}', 'comment', cost=0))
                if stamps and stepstart[g] in self.stamp_steps:
                    out += self.stamp(self.stamp_steps.index(stepstart[g]) + 1)
            out += self.pre.get(g, [])
            out.append(self.M[g])
            out += self.post.get(g, [])
            bud = spare[g]
            act = [(ci, ch) for ci, ch in enumerate(self.chains) if pos[ci] < len(ch) and ch[pos[ci]].e <= g]
            due = {}
            for ci, ch in act:
                for x in ch[pos[ci]:]:
                    if x.e > g or x.d >= NM:
                        break
                    due[x.d] = due.get(x.d, 0) + x.cost
            tot = 0
            extra = 0
            for d in sorted(due):
                tot += due[d]
                dd = max(d, g)
                avail = cum[dd + 1] - cum[g]
                if tot > avail:
                    extra = max(extra, (tot - avail) / (dd - g + 1))
            bud += extra
            while True:
                cand = [(ch[pos[ci]].d, ci) for ci, ch in enumerate(self.chains)
                        if pos[ci] < len(ch) and ch[pos[ci]].e <= g]
                if not cand:
                    break
                dl, ci = min(cand)
                x = self.chains[ci][pos[ci]]
                if dl > g and x.cost > bud + 1.9:
                    break
                out.append(x)
                bud -= x.cost
                pos[ci] += 1
            used = spare[g] + extra - bud + mand[g]
            self.over += max(0, used - 24)
        for ci, ch in enumerate(self.chains):
            out += ch[pos[ci]:]
        return out

    def stamp(self, k):
        return [I(f's_memtime s[{48+2*k}:{49+2*k}]\ns_waitcnt lgkmcnt(0)', 'stamp')]

    def resolve(self, L):
        vm = []
        ds = []
        out = []
        for x in L:
            if x.kind in ('dma', 'vmem', 'store'):
                vm.append(x.tag)
            elif x.kind == 'ds':
                ds.append(x.tag)
            elif x.kind == 'wait_vm':
                last = max(i for i, t in enumerate(vm) if t in x.waitfor)
                nle = len(vm) - 1 - last
                assert nle <= 63
                x.txt = f's_waitcnt vmcnt({nle})'
            elif x.kind == 'wait_lgkm':
                last = max(i for i, t in enumerate(ds) if t in x.waitfor)
                nle = len(ds) - 1 - last
                assert nle <= 15, nle
                x.txt = f's_waitcnt lgkmcnt({nle})'
            out.append(x)
        return out

    def hazards(self, L):
        out = []
        hist = []
        nnop = 0
        VAL = ('valu', 'trans', 'perm')
        for x in L:
            if x.kind == 'comment':
                out.append(x)
                continue
            need = 0
            dist = 0
            for y in reversed(hist[-20:]):
                req = 0
                if y.kind == 'mfma':
                    if x.kind == 'mfma':
                        if y.wr & x.rd:
                            req = 12
                        if x.srcc and (y.wr & x.srcc) and y.wr != x.srcc:
                            req = max(req, 10)
                    elif x.kind in VAL:
                        if y.wr & (x.rd | x.wr):
                            req = 12
                    elif x.kind in ('store', 'ds', 'vmem', 'dma'):
                        if y.wr & (x.rd | x.wr):
                            req = 12
                elif y.kind in VAL:
                    if x.kind == 'mfma' and (y.wr & (x.rd | (x.srcc or set()))):
                        req = 2
                    if x.kind == 'perm' and (y.wr & x.rd):
                        req = 2
                    if y.kind == 'trans' and x.kind in ('valu', 'perm') and (y.wr & x.rd):
                        req = max(req, 1)
                elif y.kind == 'salu':
                    if x.kind == 'dma' and 'm0' in y.wr:
                        req = 1
                elif y.kind == 'store':
                    if x.kind in VAL and (x.wr & y.rd):
                        req = 2
                need = max(need, req - dist)
                dist += y.states if hasattr(y, 'states') else 1
            if need > 0:
                nop = I(f's_nop {need - 1}', 'nop')
                nop.states = need
                out.append(nop)
                hist.append(nop)
                nnop += need
            out.append(x)
            hist.append(x)
        self.nnop = nnop
        return out

    def prologue_text(self):
        o = self.o
        lg = int(math.log2(o.nh))
        T = []
        A = T.append
        A('s_cmp_ge_u32 s2, 256')
        A('s_cbranch_scc1 L_end')
        if o.stamps:
            A('s_memrealtime s[84:85]')
            A('s_memtime s[48:49]')
        A('s_load_dwordx8 s[36:43], s[0:1], 0')
        A('s_load_dwordx2 s[44:45], s[0:1], 32')
        A('s_load_dwordx2 s[46:47], s[0:1], 56')
        A('v_lshrrev_b32 v21, 6, v0')
        A('v_and_b32 v22, 63, v0')
        A('s_lshr_b32 s33, s2, 3')
        if o.prefetch:
            A('s_getpc_b64 s[34:35]')
            A('L_pc:')
            A('s_lshl_b32 s32, s33, 12')
            A('v_lshlrev_b32 v24, 4, v0')
            A('v_add_u32 v24, s32, v24')
            A('v_min_u32 v24, L_code_end-L_pc-16, v24')
            A('v_mov_b32 v25, s35')
            A('v_add_co_u32 v24, vcc, s34, v24')
            A('v_addc_co_u32 v25, vcc, 0, v25, vcc')
            A('global_load_dwordx4 v[28:31], v[24:25], off')
        A('v_readfirstlane_b32 s3, v21')
        A('s_and_b32 s32, s2, 7')
        A(f's_and_b32 s34, s32, {8 // o.nh - 1}')
        A(f's_lshl_b32 s34, s34, {lg}')
        A(f's_and_b32 s35, s33, {o.nh - 1}')
        A('s_or_b32 s34, s34, s35')
        A(f's_lshr_b32 s35, s32, {3 - lg}')
        A(f's_mul_i32 s35, s35, {32 // o.nh}')
        A(f's_lshr_b32 s33, s33, {lg}')
        A('s_add_u32 s35, s35, s33')
        A(f's_lshl_b32 s{sLW}, s3, 12')
        A(f's_mov_b32 s{sC}, 0x{f2u(CSC):x}')
        A(f's_mov_b32 s{sIC}, 0x{f2u(1.0 / CSC):x}')
        A('v_lshrrev_b32 v23, 3, v22')
        A('v_and_b32 v24, 7, v22')
        A('v_lshrrev_b32 v25, 4, v22')
        A('v_and_b32 v26, 1, v25')
        A('v_lshlrev_b32 v26, 2, v26')
        A('v_xor_b32 v26, v24, v26')
        A('v_lshlrev_b32 v26, 4, v26')
        A('v_and_b32 v27, 1, v21')
        A(f'v_lshl_add_u32 v{vOV}, v21, 5, v23')
        A(f'v_lshl_add_u32 v{vOV}, v{vOV}, 9, v26')
        A('v_lshl_add_u32 v17, v27, 5, v23')
        A('v_lshrrev_b32 v18, 1, v21')
        A('v_lshl_add_u32 v18, v18, 7, v26')
        A(f'v_lshl_add_u32 v{vOQ}, v17, 13, v18')
        A(f'v_mul_u32_u24 v{vOO}, 896, v17')
        A(f'v_add_u32 v{vOO}, v{vOO}, v18')
        A('v_lshl_add_u32 v17, v27, 2, v25')
        A('v_xor_b32 v17, v24, v17')
        A('v_lshlrev_b32 v17, 4, v17')
        A(f'v_lshl_add_u32 v{vOK}, v21, 3, v23')
        A(f'v_lshl_add_u32 v{vOK}, v{vOK}, 9, v17')
        A('v_and_b32 v17, 31, v22')
        A('v_lshrrev_b32 v18, 5, v22')
        A('v_lshl_add_u32 v19, v21, 5, v17')
        A('v_mul_u32_u24 v19, 896, v19')
        A('v_lshl_add_u32 v19, v18, 4, v19')
        A('v_and_b32 v11, 0x13, v17')
        A('v_and_b32 v12, 4, v17')
        A('v_lshl_or_b32 v11, v12, 1, v11')
        A('v_and_b32 v12, 8, v17')
        A('v_lshrrev_b32 v12, 1, v12')
        A('v_or_b32 v11, v11, v12')
        A('v_lshrrev_b32 v12, 3, v11')
        A('v_lshlrev_b32 v12, 12, v12')
        A('v_and_b32 v13, 7, v11')
        A('v_lshl_add_u32 v12, v13, 7, v12')
        A('v_bfe_u32 v13, v11, 1, 3')
        A('v_xor_b32 v13, v13, v18')
        A(f'v_lshl_add_u32 v{vK[0]}, v13, 4, v12')
        for i in range(1, 4):
            A(f'v_xor_b32 v{vK[i]}, {32 * i}, v{vK[0]}')
        A('v_bfe_u32 v11, v22, 2, 2')
        A('v_lshl_add_u32 v12, v18, 3, v11')
        A('v_lshlrev_b32 v12, 7, v12')
        A('v_bfe_u32 v13, v22, 4, 1')
        A('v_lshl_add_u32 v12, v13, 5, v12')
        A('v_and_b32 v13, 1, v22')
        A('v_lshl_add_u32 v12, v13, 4, v12')
        A('v_bfe_u32 v13, v22, 1, 1')
        A('v_lshl_add_u32 v12, v13, 3, v12')
        A('v_lshrrev_b32 v13, 1, v11')
        A(f'v_lshl_add_u32 v{vT[0]}, v13, 6, v12')
        A(f'v_xor_b32 v{vT[1]}, 64, v{vT[0]}')
        A(f'v_mul_u32_u24 v{vST}, 28672, v21')
        A(f'v_lshl_add_u32 v{vST}, v22, 4, v{vST}')
        A(f'v_mov_b32 v{vTMP}, v19')
        A('s_waitcnt lgkmcnt(0)')
        A('s_mul_i32 s32, s35, 114688')
        A(f's_add_u32 s{sX}, s36, s32\ns_addc_u32 s{sX+1}, s37, 0\ns_mov_b32 s{sX+2}, 114688\ns_mov_b32 s{sX+3}, 0x20000')
        A('s_lshl_b32 s32, s34, 10')
        A(f's_add_u32 s{sWQ}, s42, s32\ns_addc_u32 s{sWQ+1}, s43, 0\ns_sub_u32 s{sWQ+2}, 3670016, s32\ns_mov_b32 s{sWQ+3}, 0x20000')
        A('s_lshl_b32 s33, s35, 3\ns_add_u32 s33, s33, s34')
        A('s_lshl_b32 s32, s33, 19')
        A(f's_add_u32 s{sV}, s40, s32\ns_addc_u32 s{sV+1}, s41, 0\ns_mov_b32 s{sV+2}, 524288\ns_mov_b32 s{sV+3}, 0x20000')
        A(f's_add_u32 s{sK}, s38, s32\ns_addc_u32 s{sK+1}, s39, 0\ns_sub_u32 s{sK}, s{sK}, 4096\ns_subb_u32 s{sK+1}, s{sK+1}, 0')
        A(f's_mov_b32 s{sK+2}, {524288 + 4096}\ns_mov_b32 s{sK+3}, 0x20000')
        A('s_mul_i32 s32, s34, 458752')
        A(f's_add_u32 s{sWO}, s44, s32\ns_addc_u32 s{sWO+1}, s45, 0\ns_mov_b32 s{sWO+2}, 458752\ns_mov_b32 s{sWO+3}, 0x20000')
        A('s_mul_i32 s32, s33, 114688')
        A(f's_add_u32 s{sWS}, s46, s32\ns_addc_u32 s{sWS+1}, s47, 0\ns_mov_b32 s{sWS+2}, 114688\ns_mov_b32 s{sWS+3}, 0x20000')
        return T

    def rare_text(self):
        T = []
        A = T.append
        for lab, last, hi in self.stubs:
            A(f'L_stub_{lab}:')
            A(f's_mov_b32 s92, {hi}')
            A(f's_call_b64 s[{sRET}:{sRET+1}], L_rare')
            if last:
                for i in range(16):
                    A(f'v_mul_f32 v{ACC+i}, v{ACC+i}, v{vF}')
                A('s_nop 1')
            A(f's_branch L_back_{lab}')
        A('L_rare:')
        A('s_nop 15')
        A(f'v_mov_b32 v{vT1}, v{vMX}')
        A(f'v_mov_b32 v{vT2}, v{vMX}')
        A('s_nop 1')
        A(f'v_permlane32_swap_b32 v{vT1}, v{vT2}')
        A(f'v_max_f32 v{vT1}, v{vT1}, v{vT2}')
        A(f'v_fma_f32 v{vT1}, v{vT1}, s{sC}, -v{vMC}')
        A(f'v_max_f32 v{vT1}, 0, v{vT1}')
        A(f'v_ceil_f32 v{vT1}, v{vT1}')
        A(f'v_add_f32 v{vMC}, v{vMC}, v{vT1}')
        A(f'v_add_f32 v{vT2}, 0x41000000, v{vMC}')
        A(f'v_mul_f32 v{vTHR}, s{sIC}, v{vT2}')
        A(f'v_exp_f32 v{vF}, -v{vT1}')
        A(f'v_min_f32 v{vT1}, 0x437f0000, v{vT1}')
        A(f'v_cvt_u32_f32 v{vT1}, v{vT1}')
        A(f'v_mul_f32 v{vL0}, v{vL0}, v{vF}')
        A(f'v_mul_f32 v{vL1}, v{vL1}, v{vF}')
        A(f'v_mul_u32_u24 v{vT1}, 0x800080, v{vT1}')
        return T

    def text(self):
        o = self.o
        self.build()
        marks = [0, 14, 44, 76, 92]
        self.stamp_steps = marks[1:] if o.stamps else []
        L = self.hazards(self.resolve(self.schedule()))
        T = []
        A = T.append
        A(f'; @launch kernel={KMAIN} grid=(256,1,1) block=(256,1,1) lds=163840')
        A(f'; @launch kernel={KRED} grid=(28,32,1) block=(256,1,1) lds=0')
        A('.amdgcn_target "amdgcn-amd-amdhsa--gfx950"')
        A('.text')
        A(f'.globl {KMAIN}\n.p2align 8\n.type {KMAIN},@function\n{KMAIN}:')
        T += self.prologue_text()
        for x in L:
            A(x.txt)
        if o.stamps:
            A('s_memtime s[58:59]\ns_waitcnt vmcnt(0)\ns_memtime s[60:61]\ns_memrealtime s[86:87]\ns_waitcnt lgkmcnt(0)')
            A('s_add_u32 s64, s46, 0x4000000\ns_addc_u32 s65, s47, 0\ns_mov_b32 s66, 0x200000\ns_mov_b32 s67, 0x20000')
            for k in range(1, 7):
                A(f's_sub_u32 s{48+2*k}, s{48+2*k}, s48\nv_mov_b32 v{32+k}, s{48+2*k}')
            A('v_mov_b32 v32, s84\nv_mov_b32 v39, s86')
            A('s_lshl_b32 s68, s2, 7\ns_lshl_b32 s69, s3, 5\ns_add_u32 s68, s68, s69\nv_mov_b32 v40, s68')
            A('v_mbcnt_lo_u32_b32 v41, -1, 0\nv_mbcnt_hi_u32_b32 v41, -1, v41')
            if o.stamps >= 2:
                A('s_lshl_b32 s68, s2, 12\ns_lshl_b32 s69, s3, 10\ns_add_u32 s68, s68, s69\ns_add_u32 s68, s68, 0x10000')
                A('v_lshlrev_b32 v42, 2, v41\nv_add_u32 v42, s68, v42')
                for k, r in enumerate([21, 22, 23, 0]):
                    A(f'v_subrev_u32 v{r}, s{84 if (o.stamps == 3 and k < 2) else 48}, v{r}')
                    A(f'buffer_store_dword v{r}, v42, s[64:67], 0 offen offset:{256*k}')
            A('v_cmp_eq_u32 vcc, 0, v41\ns_and_saveexec_b64 s[70:71], vcc')
            A('buffer_store_dwordx4 v[32:35], v40, s[64:67], 0 offen')
            A('buffer_store_dwordx4 v[36:39], v40, s[64:67], 0 offen offset:16')
        A('L_end:\ns_endpgm')
        T += self.rare_text()
        for i in range(64):
            A(f'v_pk_sub_u16 v{PR+i}, v{PR+i}, v{vT1} clamp')
        A('s_cmp_eq_u32 s92, 0\ns_cbranch_scc1 L_rare_done')
        for i in range(64, 128):
            A(f'v_pk_sub_u16 v{PR+i}, v{PR+i}, v{vT1} clamp')
        A('L_rare_done:')
        A('s_nop 1')
        A(f's_setpc_b64 s[{sRET}:{sRET+1}]')
        A('L_code_end:')
        T += self.reduce_text()
        A('.section .rodata,"a"')
        A(f'''.p2align 6
.amdhsa_kernel {KMAIN}
  .amdhsa_next_free_vgpr 512
  .amdhsa_next_free_sgpr 102
  .amdhsa_accum_offset 256
  .amdhsa_group_segment_fixed_size 0
  .amdhsa_kernarg_size 64
  .amdhsa_user_sgpr_count 2
  .amdhsa_user_sgpr_kernarg_segment_ptr 1
  .amdhsa_system_sgpr_workgroup_id_x 1
  .amdhsa_float_denorm_mode_32 3
.end_amdhsa_kernel
.p2align 6
.amdhsa_kernel {KRED}
  .amdhsa_next_free_vgpr 56
  .amdhsa_next_free_sgpr 32
  .amdhsa_accum_offset 56
  .amdhsa_group_segment_fixed_size 0
  .amdhsa_kernarg_size 64
  .amdhsa_user_sgpr_count 2
  .amdhsa_user_sgpr_kernarg_segment_ptr 1
  .amdhsa_system_sgpr_workgroup_id_x 1
  .amdhsa_system_sgpr_workgroup_id_y 1
  .amdhsa_float_denorm_mode_32 3
.end_amdhsa_kernel''')
        return '\n'.join(T) + '\n'

    def reduce_text(self):
        T = []
        A = T.append
        A(f'.globl {KRED}\n.p2align 8\n.type {KRED},@function\n{KRED}:')
        A('s_cmp_ge_u32 s2, 28\ns_cbranch_scc1 L_rend')
        A('s_load_dwordx2 s[4:5], s[0:1], 40')
        A('s_load_dwordx2 s[6:7], s[0:1], 56')
        A('s_lshl_b32 s16, s2, 12')
        A('v_lshlrev_b32 v1, 4, v0')
        A('v_add_u32 v1, s16, v1')
        A('s_mul_i32 s17, s3, 917504')
        A('s_mul_i32 s18, s2, 37\ns_lshr_b32 s18, s18, 8')
        A('s_mul_i32 s19, s18, 7\ns_sub_u32 s19, s2, s19')
        A('s_waitcnt lgkmcnt(0)')
        A('s_add_u32 s8, s6, s17\ns_addc_u32 s9, s7, 0\ns_mov_b32 s10, 917504\ns_mov_b32 s11, 0x20000')
        for p in range(8):
            A(f's_mov_b32 s20, {p * 114688}')
            A(f'buffer_load_dwordx4 v[{8+4*p}:{11+4*p}], v1, s[8:11], s20 offen{self.o.rdflags}')
        A('s_mul_i32 s17, s3, 114688')
        A('s_add_u32 s12, s4, s17\ns_addc_u32 s13, s5, 0\ns_mov_b32 s14, 114688\ns_mov_b32 s15, 0x20000')
        A('v_and_b32 v2, 31, v0')
        A('s_lshl_b32 s18, s18, 5')
        A('v_add_u32 v2, s18, v2')
        A('v_mul_u32_u24 v2, 896, v2')
        A('v_lshrrev_b32 v3, 5, v0')
        A('v_lshl_add_u32 v2, v3, 4, v2')
        A('s_lshl_b32 s19, s19, 7')
        A('v_add_u32 v2, s19, v2')
        for p in range(8):
            A(f's_waitcnt vmcnt({7 - p})')
            for i in range(4):
                r = 8 + 4 * p + i
                if p == 0:
                    A(f'v_lshlrev_b32 v{40+2*i}, 16, v{r}')
                    A(f'v_and_b32 v{41+2*i}, 0xffff0000, v{r}')
                else:
                    A(f'v_lshlrev_b32 v{48+2*i}, 16, v{r}')
                    A(f'v_and_b32 v{49+2*i}, 0xffff0000, v{r}')
            if p:
                for i in range(8):
                    A(f'v_add_f32 v{40+i}, v{40+i}, v{48+i}')
        for i in range(4):
            A(f'v_cvt_pk_bf16_f32 v{4+i}, v{40+2*i}, v{41+2*i}')
        A('buffer_store_dwordx4 v[4:7], v2, s[12:15], 0 offen')
        A('L_rend:\ns_endpgm')
        return T


def main():
    ap = argparse.ArgumentParser()
    ap.add_argument('-o', default='standalone__mha_block_cached__near_ridge.s')
    ap.add_argument('--la', type=int, default=6)
    ap.add_argument('--nh', type=int, default=2)
    ap.add_argument('--nt', type=int, default=1)
    ap.add_argument('--budget', type=int, default=24)
    ap.add_argument('--dmacost', type=int, default=8)
    ap.add_argument('--prefetch', type=int, default=1)
    ap.add_argument('--stamps', type=int, default=0)
    ap.add_argument('--stflags', default='')
    ap.add_argument('--rdflags', default='')
    o = ap.parse_args()
    g = Gen(o)
    t = g.text()
    open(o.o, 'w').write(t)
    print(f'mfma={g.NM} nops={g.nnop} over={g.over:.0f} bytes={len(t)}', file=sys.stderr)


if __name__ == '__main__':
    main()
```
